```python
import torch

def _softmax(x, axis=-1):
    return torch.softmax(x, dim=axis)
def _gelu(x):
    return torch.nn.functional.gelu(x, approximate="tanh")
def _silu(x):
    return torch.nn.functional.silu(x)
def _sigmoid(x):
    return torch.sigmoid(x)
def _layernorm(x, axis=-1, eps=1e-5):
    m = x.mean(dim=axis, keepdim=True)
    v = x.var(dim=axis, keepdim=True, unbiased=False)
    return (x - m) / torch.sqrt(v + eps)
def _scatter_add(tgt, idx, src, axis=0):
    return tgt.clone().index_add_(axis, idx, src)
def _segment_sum(src, seg, n):
    out = torch.zeros((n,) + src.shape[1:], dtype=src.dtype)
    return out.index_add_(0, seg, src)
def _pad(x, pw):
    flat = tuple(v for pair in reversed(pw) for v in pair)
    return torch.nn.functional.pad(x, flat)

kernel_name = 'parallel_sum__mha_block_cached__glu_gated_bilinear__decode'

def setup_inputs():

    _w = (lambda a: (lambda t: t.to(torch.bfloat16) if t.is_floating_point() else t)(torch.as_tensor(a)))
    def _A_setup():
        B, Sq, D = 1, 1, 640
        H, Sk, Dh = 32, 32768, 192
        return {
            "x": _w((lambda *s: torch.randn(*s, dtype=torch.bfloat16) * 0.05)(B, Sq, D)),
            "k_cache": _w((lambda *s: torch.randn(*s, dtype=torch.bfloat16) * 3.2)(B, H, Sk, Dh)),
            "v_cache": _w((lambda *s: torch.randn(*s, dtype=torch.bfloat16) * 1.6)(B, H, Sk, Dh)),
            "wq": _w((lambda *s: torch.randn(*s, dtype=torch.bfloat16) * 3.2)(D, H * Dh) * (D ** -0.5)),
            "wo": _w((lambda *s: torch.randn(*s, dtype=torch.bfloat16) * 1.6)(H * Dh, D) * ((H * Dh) ** -0.5)),
        }
    _A_in = _A_setup()

    def _B_setup():
        B, S, D, F = 1, 1, 640, 1536
        return {
            "x": _w((lambda *s: torch.randn(*s, dtype=torch.bfloat16) * 0.05)(B, S, D)),
            "w_gate": _w((lambda *s: torch.randn(*s, dtype=torch.bfloat16) * 1.6)(D, F) * (D ** -0.5)),
            "w_up": _w((lambda *s: torch.randn(*s, dtype=torch.bfloat16) * 1.6)(D, F) * (D ** -0.5)),
            "w_down": _w((lambda *s: torch.randn(*s, dtype=torch.bfloat16) * 1.6)(F, D) * (F ** -0.5)),
        }
    _B_in = _B_setup()

    return {
        "A_x": _A_in["x"],
        "A_k_cache": _A_in["k_cache"],
        "A_v_cache": _A_in["v_cache"],
        "A_wq": _A_in["wq"],
        "A_wo": _A_in["wo"],
        "B_x": _B_in["x"],
        "B_w_gate": _B_in["w_gate"],
        "B_w_up": _B_in["w_up"],
        "B_w_down": _B_in["w_down"],
    }

def reference(A_x, A_k_cache, A_v_cache, A_wq, A_wo, B_x, B_w_gate, B_w_up, B_w_down):
    def _A_ref(x, k_cache, v_cache, wq, wo):
        B, Sq, D = x.shape
        H, Dh = 32, 192
        q = (lambda x, *d: x.permute(*d))((x @ wq).reshape(B, Sq, H, Dh), 0, 2, 1, 3)
        scores = torch.einsum("bhqd,bhkd->bhqk", q, k_cache) * (Dh ** -0.5)
        p = _softmax(scores, axis=-1)
        o = torch.einsum("bhqk,bhkd->bhqd", p, v_cache)
        return (lambda x, *d: x.permute(*d))(o, 0, 2, 1, 3).reshape(B, Sq, H * Dh) @ wo

    def _B_ref(x, w_gate, w_up, w_down):
        g = torch.einsum("bsd,df->bsf", x, w_gate)
        u = torch.einsum("bsd,df->bsf", x, w_up)
        h = g * u
        return torch.einsum("bsf,fd->bsd", h, w_down)

    x = A_x
    xn = _layernorm(x, axis=-1)
    return x + _A_ref(xn, A_k_cache, A_v_cache, A_wq, A_wo) + _B_ref(xn, B_w_gate, B_w_up, B_w_down)
```

```python
import re

TRANS = ("v_exp_f32", "v_log_f32", "v_rcp_f32", "v_rsq_f32", "v_sqrt_f32", "v_sin_f32", "v_cos_f32")
REG_RE = re.compile(r"^(v|s)(\d+)$|^(v|s)\[(\d+):(\d+)\]$")

def regs_of(tok):
    tok = tok.strip()
    if tok.startswith("-") and len(tok) > 1 and tok[1] in "vs": tok = tok[1:]
    if tok.startswith("|") and tok.endswith("|"): tok = tok[1:-1]
    if tok == "vcc": return [("s", "vcc")]
    if tok in ("vcc_lo", "vcc_hi"): return [("s", "vcc")]
    if tok == "exec": return [("s", "exec")]
    if tok == "m0": return [("s", "m0")]
    m = REG_RE.match(tok)
    if not m: return []
    if m.group(1): return [(m.group(1), int(m.group(2)))]
    return [(m.group(3), i) for i in range(int(m.group(4)), int(m.group(5)) + 1)]

class Ins:
    __slots__ = ("text", "op", "kind", "wr", "rd", "dpp", "is_label", "target", "data_st", "lanesel")
    def __init__(self, text):
        self.text = text
        t = text.split(";")[0].strip()
        self.is_label = t.endswith(":")
        self.op = ""; self.kind = ""; self.wr = set(); self.rd = set(); self.dpp = False; self.target = None
        self.data_st = set(); self.lanesel = set()
        if self.is_label or not t or t.startswith("."):
            self.kind = "label" if self.is_label else "dir"; return
        parts = t.split(None, 1)
        op = parts[0]; self.op = op
        rest = parts[1] if len(parts) > 1 else ""
        ops = []; depth = 0; cur = ""
        for ch in rest:
            if ch == "[": depth += 1
            if ch == "]": depth -= 1
            if ch == "," and depth == 0: ops.append(cur.strip()); cur = ""
            else: cur += ch
        if cur.strip(): ops.append(cur.strip())
        mods = ""
        if ops:
            sp = ops[-1].split(None, 1)
            ops[-1] = sp[0]
            mods = sp[1] if len(sp) > 1 else ""
        R = [regs_of(o) for o in ops]
        flat = lambda L: set(x for l in L for x in l)
        if op.startswith("v_"):
            self.kind = "valu"
            base = op.replace("_e32", "").replace("_e64", "").replace("_dpp", "")
            self.op = base
            self.dpp = ("quad_perm" in mods or "row_" in mods or op.endswith("_dpp"))
            if base.startswith("v_cmp"):
                self.wr = flat(R[:1]); self.rd = flat(R[1:])
            elif base.startswith("v_permlane") and "swap" in base:
                self.wr = flat(R[:2]); self.rd = flat(R[:2])
            elif base in ("v_readlane_b32",):
                self.wr = flat(R[:1]); self.rd = flat(R[1:]); self.lanesel = flat(R[2:3])
            elif base in ("v_writelane_b32",):
                self.wr = flat(R[:1]); self.rd = flat(R); self.lanesel = flat(R[2:3])
            elif base.startswith("v_dot2c") or base in ("v_fmac_f32", "v_mac_f32"):
                self.wr = flat(R[:1]); self.rd = flat(R)
            elif base in ("v_cndmask_b32",):
                self.wr = flat(R[:1]); self.rd = flat(R[1:])
                if len(ops) == 3 or (len(ops) == 4 and ops[3] == "vcc"): self.rd.add(("s", "vcc"))
            elif base in ("v_add_co_u32", "v_sub_co_u32", "v_addc_co_u32"):
                self.wr = flat(R[:2]); self.rd = flat(R[2:])
            else:
                self.wr = flat(R[:1]); self.rd = flat(R[1:])
                if self.dpp: self.rd |= flat(R[:1])
        elif op.startswith("ds_"):
            self.kind = "ds"
            if op.startswith("ds_read") or "rtn" in op or "bpermute" in op or "permute" in op or "swizzle" in op:
                self.wr = flat(R[:1]); self.rd = flat(R[1:])
            else:
                self.rd = flat(R)
        elif op.startswith("buffer_") or op.startswith("global_"):
            self.kind = "vmem"
            if "load" in op:
                self.wr = flat(R[:1]); self.rd = flat(R[1:])
            elif "atomic" in op:
                self.rd = flat(R)
                if "sc0" in mods: self.wr = flat(R[:1])
            else:
                self.rd = flat(R)
                if op.endswith("x4") or op.endswith("x3"):
                    self.data_st = flat(R[:1]) if op.startswith("buffer_") else flat(R[1:2])
        elif op.startswith("s_"):
            self.kind = "salu"
            if op.startswith("s_cbranch") or op == "s_branch":
                self.target = ops[0]
            elif op.startswith("s_cmp") or op in ("s_waitcnt", "s_nop", "s_barrier", "s_sleep", "s_endpgm", "s_setprio"):
                self.rd = flat(R)
            else:
                self.wr = flat(R[:1]); self.rd = flat(R[1:])
        else:
            raise ValueError("unknown instr: " + text)

def states(ins):
    if ins.kind in ("label", "dir", ""): return 0
    if ins.op == "s_nop":
        return int(ins.text.split(";")[0].split()[1]) + 1
    return 1

def need(prod, cons):
    n = 0
    if prod.kind == "valu":
        vw = {r for r in prod.wr if r[0] == "v"}
        sw = {r for r in prod.wr if r[0] == "s"}
        if vw:
            if cons.kind == "valu":
                hit = vw & cons.rd
                if cons.dpp and hit: n = max(n, 2)
                if cons.op.startswith("v_permlane") and hit: n = max(n, 2)
                if cons.op in ("v_readlane_b32", "v_readfirstlane_b32") and hit: n = max(n, 1)
            if prod.op in TRANS and (vw & cons.rd) and not (cons.kind == "valu" and cons.op in TRANS and False): n = max(n, 1)
            if prod.op.startswith("v_dot2"):
                if cons.kind in ("valu", "vmem", "ds"):
                    if vw & cons.rd:
                        same_acc = cons.op == prod.op and (vw & cons.wr) and not cons.dpp
                        if same_acc:
                            toks = [x.strip() for x in cons.text.split(";")[0].split(None, 1)[1].split(",")]
                            srcab = set()
                            for tk in toks[1:]: srcab |= set(regs_of(tk.split()[0]))
                            if vw & srcab: n = max(n, 3)
                        else: n = max(n, 3)
                    elif (vw & cons.wr) and cons.op != prod.op: n = max(n, 3)
        if sw:
            if cons.kind == "valu":
                if sw & cons.lanesel: n = max(n, 4)
                elif sw & cons.rd: n = max(n, 2)
            if cons.kind == "vmem" and (sw & cons.rd): n = max(n, 5)
            if ("s", "exec") in sw and cons.kind == "valu" and cons.dpp: n = max(n, 5)
    if prod.data_st and (prod.data_st & cons.wr):
        n = max(n, 2 if cons.kind == "valu" else 1)
    return n

class Asm:
    def __init__(self):
        self.lines = []
    def __call__(self, s):
        for l in s.split("\n"):
            l = l.strip()
            if l: self.lines.append(l)
    def label(self, name): self.lines.append(name + ":")
    def finalize(self, WIN=6):
        ins = [Ins(l) for l in self.lines]
        st = {}
        def rebuild():
            labels = {x.text[:-1].strip(): i for i, x in enumerate(ins) if x.is_label}
            preds = {}
            for i, x in enumerate(ins):
                if x.target is not None:
                    preds.setdefault(labels[x.target], []).append(i)
            st["preds"] = preds
        def back(i, budget, seen):
            out = []
            j = i - 1; d = 0
            while j >= 0 and d < budget:
                x = ins[j]
                if x.is_label:
                    for b in st["preds"].get(j, []):
                        if (b, d) in seen: continue
                        seen.add((b, d))
                        for (p, dd) in back(b, budget - d - 1, seen): out.append((p, dd + d + 1))
                elif x.kind in ("dir", ""):
                    pass
                else:
                    if x.op in ("s_branch", "s_endpgm"): break
                    out.append((x, d))
                    d += states(x)
                j -= 1
            return out
        rebuild()
        total = 0
        for _pass in range(4):
            n_ins = 0
            i = 0
            while i < len(ins):
                x = ins[i]
                if x.kind in ("label", "dir", ""):
                    i += 1; continue
                req = 0
                for (p, d) in back(i, WIN, set()):
                    n = need(p, x)
                    if n > d: req = max(req, n - d)
                if req:
                    ins.insert(i, Ins(f"s_nop {req-1}"))
                    rebuild(); n_ins += 1
                    i += 1
                i += 1
            total += n_ins
            if n_ins == 0: break
        self.nops = total
        return "\n".join(("" if x.is_label or x.kind == "dir" else "  ") + x.text for x in ins) + "\n"
```

```python
import sys, json
sys.path.insert(0, "work")
from asmdsl import Asm

KNAME = "parallel_sum__mha_block_cached__glu_gated_bilinear__decode_kernel"

NH, SK, DH, DM = 32, 32768, 192, 640
KVB = NH * SK * DH * 2
HEADB = SK * DH * 2
TILE = 8 * DH * 2
NT = SK // 8
WS_TICK = 0x0
WS_QP = 0x10000
WS_OP = 0xC0000
WS_YP = 0x140000
WS_BP = 0x1C0000
WS_TS = 0x200000
WS_N = 0x240000
QPB = 2560
L_SO = 0
L_QL = 3328
L_HV = L_QL + 512
L_CNT = L_HV + 256
L_END = L_CNT + 64
OOBV = 0x40000000
OOBS = 0x7ff00000
LOG2E = 0x3fb8aa3b
SCALE = 0x3d93cd3a


def f32bits(x):
    import struct
    return struct.unpack("<I", struct.pack("<f", x))[0]


def gen(R=6, D=3, P=2, Ts=100, instr=False, kname=KNAME, nt="nt", spin=1 << 16, hprio=0, wnt="nt", listform=False,
        fsleep=2, gsleep=1, pre0=99, gooff=12, gocnt=1, noq=False, fine=False, noh=False, P0=None, n0=0, tsleep=1,
        earlyo=False, sprio=0, dryS=False, dryH=False, K1=1, d1=0, K2=1, d2=0, rot=0, hs='sc1', hl='sc1', ackw=0, ackq=0, outf=''):
    assert f32bits(192 ** -0.5) == SCALE, hex(f32bits(192 ** -0.5))
    assert R + 2 * D <= Ts and D <= R and D <= 4
    NDYN = NT - 32 * Ts
    a = Asm()
    A = a
    lbl = [0]

    def L(name):
        lbl[0] += 1
        return f"L_{name}_{lbl[0]}"

    sH, sS, sW = 14, 15, 3
    X, KP, VP, WQ, WO, WG, WU, WD, OUT, DBG, WS = 4, 6, 8, 10, 12, 16, 18, 20, 22, 24, 26
    TS0 = 72

    def srd(d, p, n):
        A(f"s_mov_b32 s{d}, s{p}\ns_mov_b32 s{d+1}, s{p+1}\ns_mov_b32 s{d+2}, {n}\ns_mov_b32 s{d+3}, 0x20000")

    def ts(k):
        if instr:
            A(f"s_memrealtime s[70:71]\ns_waitcnt lgkmcnt(0)\ns_mov_b32 s{TS0+k}, s70")

    def ts_store(vt, vo, srd_ws):
        if not instr: return
        for k in range(16):
            A(f"v_writelane_b32 v{vt}, s{TS0+k}, {k}")
        A(f"s_lshl_b32 s70, s2, 3\ns_add_u32 s70, s70, s{sW}\ns_lshl_b32 s70, s70, 6\ns_add_u32 s70, s70, {WS_TS}")
        A(f"v_lshlrev_b32 v{vo}, 2, v0")
        A(f"s_mov_b64 exec, 0xffff")
        A(f"buffer_store_dword v{vt}, v{vo}, s[{srd_ws}:{srd_ws+3}], s70 offen")
        A(f"s_mov_b64 exec, -1")

    def allreduce(v, t, op):
        for m in ("quad_perm:[1,0,3,2]", "quad_perm:[2,3,0,1]", "row_half_mirror", "row_mirror"):
            A(f"{op}_dpp v{v}, v{v}, v{v} {m} row_mask:0xf bank_mask:0xf")
        reduce_rows(v, t, op)

    def reduce_rows(v, t, op):
        A(f"v_mov_b32 v{t}, v{v}\nv_permlane16_swap_b32 v{v}, v{t}\n{op} v{v}, v{v}, v{t}")
        A(f"v_mov_b32 v{t}, v{v}\nv_permlane32_swap_b32 v{v}, v{t}\n{op} v{v}, v{v}, v{t}")

    def rs8(cs, mask):
        if isinstance(cs, int): cs = [cs]
        for c in cs:
            for e in range(4): A(f"v_permlane32_swap_b32 v{c+e}, v{c+e+4}")
        for c in cs:
            for e in range(4): A(f"v_add_f32 v{c+e}, v{c+e}, v{c+e+4}")
        for c in cs:
            for e in range(2): A(f"v_permlane16_swap_b32 v{c+e}, v{c+e+2}")
        for c in cs:
            for e in range(2): A(f"v_add_f32 v{c+e}, v{c+e}, v{c+e+2}")
        for c in cs:
            for e in range(2): A(f"v_add_f32_dpp v{c+e}, v{c+e}, v{c+e} row_ror:8 row_mask:0xf bank_mask:0xf")
        for c in cs:
            A(f"v_cndmask_b32 v{c}, v{c}, v{c+1}, s[{mask}:{mask+1}]")

    def spin_tail(cnt, loop, done, sl=1):
        A(f"s_sub_u32 s{cnt}, s{cnt}, 1\ns_cbranch_scc1 {done}")
        if sl: A(f"s_sleep {sl}")
        A(f"s_branch {loop}")

    A(f"s_cmp_ge_u32 s2, 256\ns_cbranch_scc1 L_end")
    A("s_load_dwordx4 s[4:7], s[0:1], 0\ns_load_dwordx4 s[8:11], s[0:1], 16\ns_load_dwordx2 s[12:13], s[0:1], 32")
    A("s_load_dwordx4 s[16:19], s[0:1], 48\ns_load_dwordx4 s[20:23], s[0:1], 64\ns_load_dwordx4 s[24:27], s[0:1], 80")
    A("s_memrealtime s[70:71]")
    A("v_lshrrev_b32 v1, 6, v0\nv_and_b32 v0, 63, v0")
    A(f"v_readfirstlane_b32 s{sW}, v1")
    A(f"s_lshr_b32 s{sH}, s2, 3\ns_and_b32 s{sS}, s2, 7")
    if rot:
        A(f"s_mul_i32 s2, s{sS}, {rot}\ns_add_u32 s{sH}, s{sH}, s2\ns_and_b32 s{sH}, s{sH}, 31\ns_lshl_b32 s2, s{sH}, 3\ns_add_u32 s2, s2, s{sS}")
    A(f"s_cmp_ge_u32 s{sW}, 4\ns_cbranch_scc1 L_S")

    SX, SWA, SWS, SWB, SDB, SWO, SWD, SOUT = 28, 32, 36, 40, 44, 48, 52, 56
    sM8 = 60
    sT, sT2, sSpin, sNon, sQP, sOPs, sYPs, sF = 62, 63, 64, 65, 66, 67, 68, 69
    sFac = 88
    sTau, sCb, sRb, sBPs = 96, 97, 98, 99
    vL4, vL2, vR, vI, vT0, vT1, vT2, vT3 = 1, 2, 3, 4, 5, 6, 7, 8
    vXs = 9
    vXA, vXB = 14, 15
    vWoff, vL8, vZo, vCol8, vOne, vCnt = 16, 17, 18, 19, 20, 21
    vXf = 22
    vML, vMH = 32, 42
    vAcc, vAcc2 = 52, 60
    vW, vW2 = 68, 108
    vG = 68
    vWO, vWDn = 148, 180
    vAccA = 212
    vTo, vBp, vPubA, vPubB, vX2, vL16, vBf, vR2 = 220, 221, 222, 223, 224, 225, 226, 228

    def tagcheck(tags, done):
        mx, mn = vT0, vT1
        def chain(dst, op, op3):
            rest = list(tags)
            if len(rest) == 1:
                A(f"v_mov_b32 v{dst}, v{rest[0]}"); return
            if len(rest) == 2:
                A(f"{op} v{dst}, v{rest[0]}, v{rest[1]}"); return
            A(f"{op3} v{dst}, v{rest[0]}, v{rest[1]}, v{rest[2]}"); rest = rest[3:]
            while len(rest) >= 2:
                A(f"{op3} v{dst}, v{dst}, v{rest[0]}, v{rest[1]}"); rest = rest[2:]
            if rest: A(f"{op} v{dst}, v{dst}, v{rest[0]}")
        chain(mx, "v_max_u32", "v_max3_u32"); chain(mn, "v_min_u32", "v_min3_u32")
        A(f"v_xor_b32 v{mx}, s{sNon}, v{mx}\nv_xor_b32 v{mn}, s{sNon}, v{mn}\nv_or_b32 v{mx}, v{mx}, v{mn}")
        A(f"v_cmp_ne_u32 vcc, 0, v{mx}\ns_cbranch_vccz {done}")

    def dense_poll(issue, n, tags, K, dl, lp, dn):
        if K == 1:
            A.label(lp)
            issue()
            A("s_waitcnt vmcnt(0)")
            tagcheck(tags, dn)
            spin_tail(sSpin, lp, dn, tsleep)
            A.label(dn)
            return
        for t in tags: A(f"v_mov_b32 v{t}, 0")
        A.label(lp)
        issue()
        if dl: A(f"s_sleep {dl}")
        A(f"s_waitcnt vmcnt({n * (K - 1)})")
        tagcheck(tags, dn)
        spin_tail(sSpin, lp, dn, 0)
        A.label(dn)

    if hprio: A(f"s_setprio {hprio}")
    lz = L("noz")
    A(f"s_cmp_lg_u32 s{sW}, 0\ns_cbranch_scc1 {lz}")
    A(f"v_lshlrev_b32 v{vT0}, 2, v0\nv_mov_b32 v{vT1}, 0\ns_mov_b64 exec, 0xffff\nds_write_b32 v{vT0}, v{vT1} offset:{L_CNT}\ns_mov_b64 exec, -1")
    A.label(lz)
    A(f"v_lshlrev_b32 v{vL4}, 2, v0\nv_lshlrev_b32 v{vL2}, 1, v0\nv_lshrrev_b32 v{vR}, 3, v0\nv_and_b32 v{vI}, 7, v0")
    A(f"v_lshlrev_b32 v{vL8}, 3, v0\nv_lshlrev_b32 v{vL16}, 4, v0")
    A(f"v_lshlrev_b32 v{vCol8}, 6, v{vI}\nv_lshl_add_u32 v{vCol8}, v{vR}, 3, v{vCol8}")
    A(f"v_mov_b32 v{vOne}, 1\nv_mov_b32 v{vCnt}, {L_CNT}")
    A(f"s_mov_b32 s{sM8}, 0xff00ff00\ns_mov_b32 s{sM8+1}, 0xff00ff00")
    A(f"v_cmp_ne_u32 vcc, 0, v0\nv_mov_b32 v{vZo}, 0\nv_mov_b32 v{vT3}, {OOBV}\nv_cndmask_b32 v{vZo}, v{vZo}, v{vT3}, vcc")
    A(f"s_movk_i32 s{sT2}, 12288\ns_cmp_eq_u32 s{sW}, 3\ns_cselect_b32 s{sT2}, 3072, s{sT2}")
    A(f"v_lshlrev_b32 v{vT0}, 4, v{vI}\nv_mad_u32_u24 v{vWoff}, v{vR}, s{sT2}, v{vT0}")
    A(f"s_mul_i32 s{sQP}, s2, {QPB}\ns_add_u32 s{sQP}, s{sQP}, {WS_QP}")
    A(f"s_lshl_b32 s{sOPs}, s2, 11\ns_add_u32 s{sOPs}, s{sOPs}, {WS_OP}")
    A("s_waitcnt lgkmcnt(0)")
    if instr: A(f"s_mov_b32 s{TS0}, s70")
    A("s_barrier")
    srd(SX, X, 1280); srd(SWS, WS, WS_N)
    if noh:
        A(f"v_mov_b32 v{vT1}, 0\ns_lshl_b32 s{sT}, s{sH}, 8\ns_add_u32 s{sT}, s{sT}, {WS_TICK}")
        A(f"buffer_store_dword v{vT1}, v{vZo}, s[{SWS}:{SWS+3}], s{sT} offen sc1")
        A("s_barrier\ns_endpgm")

    def x_loads():
        for k in range(5):
            A(f"buffer_load_dword v{vXs+k}, v{vL4}, s[{SX}:{SX+3}], 0 offen offset:{256*k}")
        A(f"s_mul_i32 s{sT}, s{sS}, 160")
        A(f"buffer_load_ushort v{vXA}, v{vL2}, s[{SX}:{SX+3}], s{sT} offen")
        A(f"buffer_load_ushort v{vXB}, v{vL2}, s[{SX}:{SX+3}], s{sT} offen offset:128")

    def unit_loads(dst, srdw, stride):
        for gi in range(10):
            A(f"buffer_load_dwordx4 v[{dst+4*gi}:{dst+4*gi+3}], v{vWoff}, s[{srdw}:{srdw+3}], s{sT} offen {wnt}")
            if gi < 9: A(f"s_add_u32 s{sT}, s{sT}, {8*stride}")

    def gemv(w, n, acc):
        for e in range(8): A(f"v_mov_b32 v{acc+e}, 0")
        for gi in range(n):
            for c in range(4):
                A(f"v_dot2c_f32_bf16 v{acc+2*c}, v{w+4*gi+c}, v{vML+gi}")
                A(f"v_dot2c_f32_bf16 v{acc+2*c+1}, v{w+4*gi+c}, v{vMH+gi}")

    def layernorm(nafter):
        A(f"s_waitcnt vmcnt({nafter})")
        for k in range(5):
            A(f"v_lshlrev_b32 v{vXf+2*k}, 16, v{vXs+k}\nv_and_b32 v{vXf+2*k+1}, 0xffff0000, v{vXs+k}")
        A(f"v_add_f32 v{vT0}, v{vXf}, v{vXf+1}")
        for k in range(2, 10): A(f"v_add_f32 v{vT0}, v{vT0}, v{vXf+k}")
        allreduce(vT0, vT1, "v_add_f32")
        A(f"v_mul_f32 v{vT0}, {hex(f32bits(1/640))}, v{vT0}")
        for k in range(10): A(f"v_sub_f32 v{vXf+k}, v{vXf+k}, v{vT0}")
        A(f"v_mul_f32 v{vT2}, v{vXf}, v{vXf}")
        for k in range(1, 10): A(f"v_fmac_f32 v{vT2}, v{vXf+k}, v{vXf+k}")
        allreduce(vT2, vT1, "v_add_f32")
        A(f"v_mul_f32 v{vT2}, {hex(f32bits(1/640))}, v{vT2}")
        A(f"v_cvt_pk_bf16_f32 v{vT0}, 0, v{vT0}")
        A(f"v_cvt_pk_bf16_f32 v{vT2}, 0, v{vT2}")
        A(f"v_add_f32 v{vT2}, {hex(f32bits(1e-5))}, v{vT2}\nv_cvt_pk_bf16_f32 v{vT2}, 0, v{vT2}")
        A(f"v_sqrt_f32 v{vT2}, v{vT2}\nv_cvt_pk_bf16_f32 v{vT2}, 0, v{vT2}")
        A(f"v_rcp_f32 v{vT3}, v{vT2}")
        for x in (vXA, vXB):
            A(f"v_lshlrev_b32 v{x}, 16, v{x}\nv_sub_f32 v{x}, v{x}, v{vT0}\nv_cvt_pk_bf16_f32 v{x}, 0, v{x}")
            A(f"v_mul_f32 v{vT1}, v{x}, v{vT3}\nv_fma_f32 v{x}, -v{vT1}, v{vT2}, v{x}\nv_fma_f32 v{x}, v{x}, v{vT3}, v{vT1}")
            A(f"v_cvt_pk_bf16_f32 v{x}, v{x}, 0")
        A(f"v_lshlrev_b32 v{vT0}, 2, v{vR}")
        for gi in range(10):
            src = vXA if gi < 8 else vXB
            A(f"ds_bpermute_b32 v{vML+gi}, v{vT0}, v{src} offset:{32*(gi%8)}")
        A("s_waitcnt lgkmcnt(0)")
        for gi in range(10): A(f"v_lshlrev_b32 v{vMH+gi}, 16, v{vML+gi}")

    def arrived():
        if gooff == 16:
            A(f"s_mov_b64 exec, 1\nds_add_u32 v{vCnt}, v{vOne} offset:16\ns_mov_b64 exec, -1")

    def nonce_lds():
        lp, dn = L("pollN"), L("pollN_done")
        A(f"s_mov_b32 s{sSpin}, {spin * 4}")
        A.label(lp)
        A(f"ds_read_b32 v{vT0}, v{vCnt} offset:12\ns_waitcnt lgkmcnt(0)\nv_readfirstlane_b32 s{sNon}, v{vT0}")
        A(f"s_cmp_lg_u32 s{sNon}, 0\ns_cbranch_scc1 {dn}")
        spin_tail(sSpin, lp, dn)
        A.label(dn)
        ts(3)

    def gather(nunits):
        lp, dn = L("gath"), L("gath_done")
        if ackq: A("s_waitcnt vmcnt(0)")
        A(f"s_mov_b32 s{sSpin}, {spin}")
        for k in range(1, 4): A(f"s_add_u32 s{sFac+k}, s{sT}, {2*QPB*k}")
        A.label(lp)
        for u in range(nunits):
            for k in range(8):
                so = sT if k < 2 else sFac + k // 2
                A(f"buffer_load_dwordx2 v[{vG+16*u+2*k}:{vG+16*u+2*k+1}], v{vL8}, s[{SWS}:{SWS+3}], s{so} offen offset:{QPB*(k%2) + 512*u} {hl}")
        A("s_waitcnt vmcnt(0)")
        tagcheck([vG + 2 * k + 1 for k in range(8 * nunits)], dn)
        spin_tail(sSpin, lp, dn, gsleep)
        A.label(dn)
        ts(4)

    lH3 = L("H3")
    A(f"s_cmp_eq_u32 s{sW}, 3\ns_cbranch_scc1 {lH3}")
    srd(SWA, WQ, 640 * 12288)
    nz = L("notick")
    A(f"s_or_b32 s{sT}, s{sS}, s{sW}\ns_cmp_lg_u32 s{sT}, 0\ns_cbranch_scc1 {nz}")
    A(f"v_mov_b32 v{vT1}, 0\ns_lshl_b32 s{sT}, s{sH}, 8\ns_add_u32 s{sT}, s{sT}, {WS_TICK}")
    A(f"buffer_store_dword v{vT1}, v{vZo}, s[{SWS}:{SWS+3}], s{sT} offen sc1")
    A.label(nz)
    x_loads()
    A(f"s_mul_i32 s{sT}, s{sS}, {80*12288}\ns_mul_i32 s{sT2}, s{sH}, 384\ns_add_u32 s{sT}, s{sT}, s{sT2}\ns_lshl_b32 s{sT2}, s{sW}, 7\ns_add_u32 s{sT}, s{sT}, s{sT2}")
    unit_loads(vW, SWA, 12288)
    srd(SDB, DBG, 256)
    ts(1)
    layernorm(10)
    l0, l1 = L("Hn0"), L("Hn1")
    A(f"s_cmp_lg_u32 s{sW}, 0\ns_cbranch_scc1 {l0}")
    A(f"buffer_load_dword v{vT3}, off, s[{SDB}:{SDB+3}], 0 sc1")
    A("s_waitcnt vmcnt(1)")
    ts(2)
    arrived()
    gemv(vW, 10, vAcc); rs8(vAcc, sM8)
    lp, dn = L("pollf"), L("pollf_ok")
    A(f"s_mov_b32 s{sSpin}, {spin}")
    A.label(lp)
    A(f"s_waitcnt vmcnt(0)\nv_readfirstlane_b32 s{sNon}, v{vT3}")
    A(f"s_cmp_lg_u32 s{sNon}, 0\ns_cbranch_scc1 {dn}")
    A(f"s_sub_u32 s{sSpin}, s{sSpin}, 1\ns_cbranch_scc1 {dn}")
    if fsleep: A(f"s_sleep {fsleep}")
    A(f"buffer_load_dword v{vT3}, off, s[{SDB}:{SDB+3}], 0 sc1\ns_branch {lp}")
    A.label(dn)
    A(f"ds_write_b32 v{vCnt}, v{vT3} offset:12")
    ts(3)
    A(f"s_branch {l1}")
    A.label(l0)
    A("s_waitcnt vmcnt(0)")
    ts(2)
    arrived()
    gemv(vW, 10, vAcc); rs8(vAcc, sM8)
    nonce_lds()
    A.label(l1)
    A(f"v_mov_b32 v{vAcc+1}, s{sNon}")
    A(f"s_lshl_b32 s{sT2}, s{sW}, 9\ns_add_u32 s{sT}, s{sQP}, s{sT2}")
    A(f"buffer_store_dwordx2 v[{vAcc}:{vAcc+1}], v{vCol8}, s[{SWS}:{SWS+3}], s{sT} offen {hs}")
    A(f"s_mul_i32 s{sT}, s{sH}, {8*QPB}\ns_add_u32 s{sT}, s{sT}, {WS_QP}\ns_lshl_b32 s{sT2}, s{sW}, 9\ns_add_u32 s{sT}, s{sT}, s{sT2}")
    gather(1)
    for k in range(1, 8): A(f"v_add_f32 v{vG}, v{vG}, v{vG+2*k}")
    A(f"v_cvt_pk_bf16_f32 v{vG}, v{vG}, 0")
    A(f"s_lshl_b32 s{sT}, s{sW}, 7\nv_add_u32 v{vT0}, s{sT}, v{vL2}")
    A(f"ds_write_b16 v{vT0}, v{vG} offset:{L_QL}")
    A(f"s_mov_b64 exec, 1\nds_add_u32 v{vCnt}, v{vOne} offset:4\ns_mov_b64 exec, -1")
    ts(5)
    lHj = L("Hjoin")
    A(f"s_branch {lHj}")
    A.label(lH3)
    A(f"s_cmp_lt_u32 s{sH}, 24\ns_cselect_b32 s{sT2}, {640*3072}, 0")
    A(f"s_mov_b32 s{SWA}, s{WG}\ns_mov_b32 s{SWA+1}, s{WG+1}\ns_mov_b32 s{SWA+2}, s{sT2}\ns_mov_b32 s{SWA+3}, 0x20000")
    A(f"s_mov_b32 s{SWB}, s{WU}\ns_mov_b32 s{SWB+1}, s{WU+1}\ns_mov_b32 s{SWB+2}, s{sT2}\ns_mov_b32 s{SWB+3}, 0x20000")
    x_loads()
    for (dst, sr) in ((vW, SWA), (vW2, SWB)):
        A(f"s_mul_i32 s{sT}, s{sS}, {80*3072}\ns_lshl_b32 s{sT2}, s{sH}, 7\ns_add_u32 s{sT}, s{sT}, s{sT2}")
        unit_loads(dst, sr, 3072)
    ts(1)
    layernorm(20)
    A("s_waitcnt vmcnt(10)")
    ts(2)
    gemv(vW, 10, vAcc)
    A("s_waitcnt vmcnt(0)")
    arrived()
    gemv(vW2, 10, vAcc2)
    rs8([vAcc, vAcc2], sM8)
    nonce_lds()
    A(f"v_mov_b32 v{vAcc+1}, s{sNon}\nv_mov_b32 v{vAcc2+1}, s{sNon}")
    A(f"buffer_store_dwordx2 v[{vAcc}:{vAcc+1}], v{vCol8}, s[{SWS}:{SWS+3}], s{sQP} offen offset:1536 {hs}")
    A(f"buffer_store_dwordx2 v[{vAcc2}:{vAcc2+1}], v{vCol8}, s[{SWS}:{SWS+3}], s{sQP} offen offset:2048 {hs}")
    A(f"s_mul_i32 s{sT}, s{sH}, {8*QPB}\ns_add_u32 s{sT}, s{sT}, {WS_QP + 1536}")
    gather(2)
    for k in range(1, 8): A(f"v_add_f32 v{vG}, v{vG}, v{vG+2*k}\nv_add_f32 v{vG+16}, v{vG+16}, v{vG+16+2*k}")
    A(f"v_cvt_pk_bf16_f32 v{vG}, 0, v{vG}\nv_cvt_pk_bf16_f32 v{vG+16}, 0, v{vG+16}\nv_mul_f32 v{vG}, v{vG}, v{vG+16}\nv_cvt_pk_bf16_f32 v{vG}, v{vG}, 0")
    A(f"ds_write_b16 v{vL2}, v{vG} offset:{L_HV}")
    A(f"s_mov_b64 exec, 1\nds_add_u32 v{vCnt}, v{vOne} offset:8\ns_mov_b64 exec, -1")
    ts(5)
    A.label(lHj)
    A(f"s_lshl_b32 s{sTau}, s{sS}, 2\ns_add_u32 s{sTau}, s{sTau}, s{sW}")
    A(f"s_mul_i32 s{sCb}, s{sTau}, 11\ns_lshr_b32 s{sCb}, s{sCb}, 5\ns_mul_i32 s{sT}, s{sCb}, 3\ns_sub_u32 s{sRb}, s{sTau}, s{sT}")
    A(f"s_cmp_lt_u32 s{sTau}, 30\ns_cselect_b32 s{sT2}, {6144*1280}, 0")
    A(f"s_mov_b32 s{SWO}, s{WO}\ns_mov_b32 s{SWO+1}, s{WO+1}\ns_mov_b32 s{SWO+2}, s{sT2}\ns_mov_b32 s{SWO+3}, 0x20000")
    srd(SWD, WD, 1536 * 1280); srd(SOUT, OUT, 1280)
    A(f"v_lshlrev_b32 v{vT0}, 4, v{vI}\ns_movk_i32 s{sT2}, 1280\nv_mad_u32_u24 v{vTo}, v{vR}, s{sT2}, v{vT0}")
    A(f"v_lshlrev_b32 v{vBp}, 2, v{vR}\nv_lshlrev_b32 v{vR2}, 1, v{vR}")
    A(f"v_lshlrev_b32 v{vT0}, 3, v{vR}\ns_movk_i32 s{sT2}, 6144\nv_mad_u32_u24 v{vPubA}, v{vI}, s{sT2}, v{vT0}\ns_movk_i32 s{sT2}, 1536\nv_mad_u32_u24 v{vPubB}, v{vI}, s{sT2}, v{vT0}")
    nb = L("noB")
    A(f"s_cmp_ge_u32 s{sH}, 24\ns_cbranch_scc1 {nb}")
    A(f"s_lshl_b32 s{sT}, s{sW}, 3\ns_add_u32 s{sF}, s{sT}, s{sS}\ns_cmp_ge_u32 s{sF}, 10\ns_cbranch_scc1 {nb}")
    A(f"s_mul_i32 s{sT}, s{sH}, {64*1280}\ns_lshl_b32 s{sT2}, s{sF}, 7\ns_add_u32 s{sT}, s{sT}, s{sT2}")
    for t in range(8):
        A(f"buffer_load_dwordx4 v[{vWDn+4*t}:{vWDn+4*t+3}], v{vTo}, s[{SWD}:{SWD+3}], s{sT} offen {wnt}")
        if t < 7: A(f"s_add_u32 s{sT}, s{sT}, {8*1280}")
    A(f"s_mul_i32 s{sBPs}, s{sF}, {8*24}\ns_add_u32 s{sBPs}, s{sBPs}, s{sH}\ns_lshl_b32 s{sBPs}, s{sBPs}, 6\ns_add_u32 s{sBPs}, s{sBPs}, {WS_BP}")
    lp, dn = L("pollh"), L("pollh_done")
    A(f"s_mov_b32 s{sSpin}, {spin}")
    A.label(lp)
    A(f"ds_read_b32 v{vT0}, v{vCnt} offset:8\ns_waitcnt lgkmcnt(0)\nv_readfirstlane_b32 s{sT}, v{vT0}")
    A(f"s_cmp_ge_u32 s{sT}, 1\ns_cbranch_scc1 {dn}")
    spin_tail(sSpin, lp, dn)
    A.label(dn)
    for t in range(8): A(f"ds_read_u16 v{vML+t}, v{vR2} offset:{L_HV + 16*t}")
    A("s_waitcnt lgkmcnt(0)")
    for t in range(8): A(f"v_lshlrev_b32 v{vMH+t}, 16, v{vML+t}")
    A("s_waitcnt vmcnt(0)")
    gemv(vWDn, 8, vAcc); rs8(vAcc, sM8)
    A(f"v_mov_b32 v{vAcc+1}, s{sNon}")
    A(f"buffer_store_dwordx2 v[{vAcc}:{vAcc+1}], v{vPubB}, s[{SWS}:{SWS+3}], s{sBPs} offen {hs}")
    A.label(nb)
    A(f"s_mul_i32 s{sT}, s{sH}, 192\ns_lshl_b32 s{sT2}, s{sRb}, 6\ns_add_u32 s{sT}, s{sT}, s{sT2}\ns_mul_i32 s{sT}, s{sT}, 1280\ns_lshl_b32 s{sT2}, s{sCb}, 7\ns_add_u32 s{sT}, s{sT}, s{sT2}")
    for t in range(8):
        A(f"buffer_load_dwordx4 v[{vWO+4*t}:{vWO+4*t+3}], v{vTo}, s[{SWO}:{SWO+3}], s{sT} offen {wnt}")
        if t < 7: A(f"s_add_u32 s{sT}, s{sT}, {8*1280}")
    A(f"s_mul_i32 s{sYPs}, s{sCb}, {8*96}\ns_mul_i32 s{sT}, s{sH}, 3\ns_add_u32 s{sYPs}, s{sYPs}, s{sT}\ns_add_u32 s{sYPs}, s{sYPs}, s{sRb}\ns_lshl_b32 s{sYPs}, s{sYPs}, 6\ns_add_u32 s{sYPs}, s{sYPs}, {WS_YP}")
    nr = L("nored")
    A(f"s_cmp_ge_u32 s2, 80\ns_cbranch_scc1 {nr}\ns_cmp_lg_u32 s{sW}, 3\ns_cbranch_scc1 {nr}")
    A(f"v_and_b32 v{vT0}, 3, v0\nv_lshlrev_b32 v{vT0}, 2, v{vT0}\ns_lshl_b32 s{sT}, s2, 4")
    A(f"buffer_load_dword v{vX2}, v{vT0}, s[{SX}:{SX+3}], s{sT} offen")
    vY = 68
    A(f"s_mul_i32 s{sF}, s2, 1536\ns_add_u32 s{sF}, s{sF}, {WS_BP}")
    A(f"v_mov_b32 v{vY+4}, 0\nv_mov_b32 v{vY+5}, s{sNon}\nv_mov_b32 v{vY+6}, 0\nv_mov_b32 v{vY+7}, s{sNon}")
    lp, dn = L("pollB"), L("pollB_done")
    A(f"s_mov_b32 s{sSpin}, {spin}")
    A.label(lp)
    A(f"buffer_load_dwordx4 v[{vY}:{vY+3}], v{vL16}, s[{SWS}:{SWS+3}], s{sF} offen {hl}")
    A("s_mov_b32 exec_hi, 0")
    A(f"buffer_load_dwordx4 v[{vY+4}:{vY+7}], v{vL16}, s[{SWS}:{SWS+3}], s{sF} offen offset:1024 {hl}")
    A("s_mov_b32 exec_hi, -1")
    A("s_waitcnt vmcnt(0)")
    tagcheck([vY + 1, vY + 3, vY + 5, vY + 7], dn)
    spin_tail(sSpin, lp, dn, 8)
    A.label(dn)
    A(f"v_add_f32 v{vBf}, v{vY}, v{vY+4}\nv_add_f32 v{vBf+1}, v{vY+2}, v{vY+6}")
    for m in ("row_ror:4", "row_ror:8"):
        for k in range(2): A(f"v_add_f32_dpp v{vBf+k}, v{vBf+k}, v{vBf+k} {m} row_mask:0xf bank_mask:0xf")
    for k in range(2): reduce_rows(vBf + k, vT0, "v_add_f32")
    for k in range(2): A(f"v_cvt_pk_bf16_f32 v{vBf+k}, 0, v{vBf+k}")
    A.label(nr)
    ts(6)
    vSo, vP1, vP2, vSo2 = 22, 23, 24, 25
    A(f"s_lshl_b32 s{sT}, s{sW}, 8\nv_add_u32 v{vSo}, s{sT}, v{vL4}\nv_lshlrev_b32 v{vSo2}, 1, v{vSo}")
    A(f"s_lshl_b32 s{sT}, s{sRb}, 9\nv_add_u32 v{vP1}, s{sT}, v{vL8}")
    A(f"v_and_b32 v{vT0}, 7, v0\nv_lshlrev_b32 v{vT0}, 11, v{vT0}\nv_add_u32 v{vP2}, {192*8}, v{vT0}")
    sDry, sOPx, sYPx, sOutx, sSpinI = 6, 7, 8, 9, 16
    if dryH:
        A(f"s_mov_b32 s{sDry}, 1\ns_mov_b32 s{sOPx}, {OOBS}\ns_mov_b32 s{sYPx}, {OOBS}\ns_mov_b32 s{sOutx}, {OOBS}\ns_mov_b32 s{sSpinI}, 0")
    else:
        A(f"s_mov_b32 s{sDry}, 0\ns_mov_b32 s{sOPx}, s{sOPs}\ns_mov_b32 s{sYPx}, s{sYPs}\ns_lshl_b32 s{sOutx}, s2, 4\ns_mov_b32 s{sSpinI}, {spin}")
    A.label("L_pass")
    A(f"s_lshl_b32 s{sF}, s{sH}, 14\ns_add_u32 s{sF}, s{sF}, {WS_OP}")
    for k in range(1, 4): A(f"s_add_u32 s{sFac+k}, s{sF}, {4096*k}")
    A("s_waitcnt vmcnt(0)")
    if dryH: A(f"s_cmp_eq_u32 s{sDry}, 1\ns_cbranch_scc1 L_nobar")
    A("s_barrier")
    if dryH: A.label("L_nobar")
    ts(7)
    vO, vMw = 68, 72
    A(f"v_mov_b32 v{vT0}, 0")
    for w in range(4):
        A(f"ds_read_b32 v{vMw+w}, v{vT0} offset:{L_SO + 800*w + 768}")
    for w in range(4):
        A(f"ds_read_b32 v{vO+w}, v{vSo} offset:{L_SO + 800*w}")
    A("s_waitcnt lgkmcnt(4)")
    A(f"v_max_f32 v{vT1}, v{vMw}, v{vMw+1}\nv_max3_f32 v{vT1}, v{vMw+2}, v{vMw+3}, v{vT1}")
    for w in range(4): A(f"v_sub_f32 v{vMw+w}, v{vMw+w}, v{vT1}")
    for w in range(4): A(f"v_mul_f32 v{vMw+w}, {hex(LOG2E)}, v{vMw+w}")
    for w in range(4): A(f"v_exp_f32 v{vMw+w}, v{vMw+w}")
    A("s_waitcnt lgkmcnt(0)")
    A(f"v_mul_f32 v{vO}, v{vO}, v{vMw}")
    for w in range(1, 4): A(f"v_fmac_f32 v{vO}, v{vO+w}, v{vMw+w}")
    A(f"v_cmp_eq_u32 vcc, 768, v{vSo}\nv_cndmask_b32 v{vO}, v{vO}, v{vT1}, vcc")
    A(f"v_mov_b32 v{vO+1}, s{sNon}")
    A(f"buffer_store_dwordx2 v[{vO}:{vO+1}], v{vSo2}, s[{SWS}:{SWS+3}], s{sOPx} offen {hs}")
    if fine:
        ts(11)
        A("s_waitcnt vmcnt(0)")
        ts(12)
    if ackw & 1: A("s_waitcnt vmcnt(0)")
    lred = L("reducer")
    A(f"s_cmp_ge_u32 s{sTau}, 30\ns_cbranch_scc1 {lred}")
    vPo, vPm = 76, 92
    lp, dn = L("hop1"), L("hop1_done")
    A(f"s_mov_b32 s{sSpin}, s{sSpinI}")
    def hop1_loads():
        A(f"buffer_load_dwordx4 v[{vPm}:{vPm+3}], v{vP2}, s[{SWS}:{SWS+3}], s{sF} offen {hl}")
        for k in range(8):
            so = sF if k < 2 else sFac + k // 2
            A(f"buffer_load_dwordx2 v[{vPo+2*k}:{vPo+2*k+1}], v{vP1}, s[{SWS}:{SWS+3}], s{so} offen offset:{2048*(k%2)} {hl}")
    dense_poll(hop1_loads, 9, [vPm + 1, vPm + 3] + [vPo + 2 * k + 1 for k in range(8)], K1, d1, lp, dn)
    if instr: A(f"s_sub_u32 s{TS0+13}, s{sSpinI}, s{sSpin}")
    ts(8)
    vE, vOn = 96, 97
    A(f"v_max_f32_dpp v{vT1}, v{vPm}, v{vPm} quad_perm:[1,0,3,2] row_mask:0xf bank_mask:0xf")
    for m in ("quad_perm:[2,3,0,1]", "row_half_mirror"):
        A(f"v_max_f32_dpp v{vT1}, v{vT1}, v{vT1} {m} row_mask:0xf bank_mask:0xf")
    A(f"v_sub_f32 v{vE}, v{vPm}, v{vT1}\nv_mul_f32 v{vE}, {hex(LOG2E)}, v{vE}\nv_exp_f32 v{vE}, v{vE}")
    A(f"v_mul_f32 v{vT1}, v{vE}, v{vPm+2}")
    for m in ("quad_perm:[1,0,3,2]", "quad_perm:[2,3,0,1]", "row_half_mirror"):
        A(f"v_add_f32_dpp v{vT1}, v{vT1}, v{vT1} {m} row_mask:0xf bank_mask:0xf")
    A(f"v_rcp_f32 v{vT1}, v{vT1}\nv_mul_f32 v{vE}, v{vE}, v{vT1}")
    for k in range(8): A(f"v_readlane_b32 s{sFac+k}, v{vE}, {k}")
    A(f"v_mul_f32 v{vOn}, s{sFac}, v{vPo}")
    for k in range(1, 8): A(f"v_fmac_f32 v{vOn}, s{sFac+k}, v{vPo+2*k}")
    A(f"v_cvt_pk_bf16_f32 v{vOn}, v{vOn}, 0")
    for t in range(8): A(f"ds_bpermute_b32 v{vML+t}, v{vBp}, v{vOn} offset:{32*t}")
    for e in range(8): A(f"v_mov_b32 v{vAccA+e}, 0")
    for t in range(8):
        A(f"s_waitcnt lgkmcnt({7-t})")
        A(f"v_lshlrev_b32 v{vMH+t}, 16, v{vML+t}")
        for c in range(4):
            A(f"v_dot2c_f32_bf16 v{vAccA+2*c}, v{vWO+4*t+c}, v{vML+t}")
            A(f"v_dot2c_f32_bf16 v{vAccA+2*c+1}, v{vWO+4*t+c}, v{vMH+t}")
    rs8(vAccA, sM8)
    A(f"v_mov_b32 v{vAccA+1}, s{sNon}")
    A(f"buffer_store_dwordx2 v[{vAccA}:{vAccA+1}], v{vPubA}, s[{SWS}:{SWS+3}], s{sYPx} offen {hs}")
    if ackw & 2: A("s_waitcnt vmcnt(0)")
    ts(9)
    A.label(lred)
    lfin = L("fin")
    A(f"s_cmp_ge_u32 s2, 80\ns_cbranch_scc1 {lfin}\ns_cmp_lg_u32 s{sW}, 3\ns_cbranch_scc1 {lfin}")
    A(f"s_mul_i32 s{sF}, s2, 6144\ns_add_u32 s{sF}, s{sF}, {WS_YP}\ns_add_u32 s{sT}, s{sF}, 4096")
    lp, dn = L("hop2"), L("hop2_done")
    A(f"s_mov_b32 s{sSpin}, s{sSpinI}")
    vY = 100
    def hop2_loads():
        for k in range(6):
            A(f"buffer_load_dwordx4 v[{vY+4*k}:{vY+4*k+3}], v{vL16}, s[{SWS}:{SWS+3}], s{sF if k < 4 else sT} offen offset:{1024*(k%4)} {hl}")
    dense_poll(hop2_loads, 6, [vY + 4 * k + 1 + 2 * u for k in range(6) for u in range(2)], K2, d2, lp, dn)
    vZ = 124
    for u in range(2):
        A(f"v_add_f32 v{vZ+2*u}, v{vY+2*u}, v{vY+4+2*u}\nv_add_f32 v{vZ+4+u}, v{vY+8+2*u}, v{vY+12+2*u}\nv_add_f32 v{vZ+6+u}, v{vY+16+2*u}, v{vY+20+2*u}")
    for u in range(2):
        A(f"v_add_f32 v{vZ+2*u}, v{vZ+2*u}, v{vZ+4+u}")
    for u in range(2):
        A(f"v_add_f32 v{vZ+2*u}, v{vZ+2*u}, v{vZ+6+u}")
    for m in ("row_ror:4", "row_ror:8"):
        for u in range(2): A(f"v_add_f32_dpp v{vZ+2*u}, v{vZ+2*u}, v{vZ+2*u} {m} row_mask:0xf bank_mask:0xf")
    for sw in ("v_permlane16_swap_b32", "v_permlane32_swap_b32"):
        A(f"v_mov_b32 v{vZ+1}, v{vZ}\nv_mov_b32 v{vZ+3}, v{vZ+2}")
        A(f"{sw} v{vZ}, v{vZ+1}\n{sw} v{vZ+2}, v{vZ+3}")
        A(f"v_add_f32 v{vZ}, v{vZ}, v{vZ+1}\nv_add_f32 v{vZ+2}, v{vZ+2}, v{vZ+3}")
    vx = vZ + 4
    A(f"v_lshlrev_b32 v{vx}, 16, v{vX2}\nv_and_b32 v{vx+1}, 0xffff0000, v{vX2}")
    A(f"v_cvt_pk_bf16_f32 v{vZ}, 0, v{vZ}\nv_cvt_pk_bf16_f32 v{vZ+2}, 0, v{vZ+2}")
    A(f"v_add_f32 v{vx}, v{vx}, v{vZ}\nv_add_f32 v{vx+1}, v{vx+1}, v{vZ+2}")
    A(f"v_cvt_pk_bf16_f32 v{vx}, 0, v{vx}\nv_cvt_pk_bf16_f32 v{vx+1}, 0, v{vx+1}")
    A(f"v_add_f32 v{vx}, v{vx}, v{vBf}\nv_add_f32 v{vx+1}, v{vx+1}, v{vBf+1}")
    A(f"v_cvt_pk_bf16_f32 v{vx}, v{vx}, v{vx+1}")
    A("s_mov_b64 exec, 15")
    A(f"buffer_store_dword v{vx}, v{vL4}, s[{SOUT}:{SOUT+3}], s{sOutx} offen {outf}")
    A("s_mov_b64 exec, -1")
    ts(10)
    A.label(lfin)
    if dryH:
        nd = L("nodry")
        A(f"s_cmp_eq_u32 s{sDry}, 0\ns_cbranch_scc1 {nd}")
        A(f"s_mov_b32 s{sDry}, 0\ns_mov_b32 s{sOPx}, s{sOPs}\ns_mov_b32 s{sYPx}, s{sYPs}\ns_lshl_b32 s{sOutx}, s2, 4\ns_mov_b32 s{sSpinI}, {spin}")
        A("s_branch L_pass")
        A.label(nd)
    ts_store(vT0, vT1, SWS)
    A("s_endpgm")

    A.label("L_S")
    SK_, SV_, SWS2 = 28, 32, 36
    sNext, sDyn, sTick, sN, sAo, sT, sT2, sSpin, sM8 = 40, 41, 42, 43, 44, 45, 46, 47, 48
    sOff = 50
    sScale, sLog = 54, 55
    vOff, vM, vLs, vA, vB2, vP, vPl, vPh, vAt, vT = 1, 2, 3, 4, 5, 6, 7, 8, 9, 10
    vTick = 12
    vQ, vAcc, vRing = 16, 28, 52
    nv = vRing + 24 * R
    if sprio: A(f"s_setprio {sprio}")
    A(f"v_lshrrev_b32 v{vA}, 3, v0\nv_and_b32 v{vB2}, 7, v0\nv_mul_u32_u24 v{vOff}, 384, v{vA}\nv_lshl_add_u32 v{vOff}, v{vB2}, 4, v{vOff}")
    A(f"v_cmp_ne_u32 vcc, 0, v0\nv_mov_b32 v{vAt}, 0\nv_mov_b32 v{vT}, {OOBV}\nv_cndmask_b32 v{vAt}, v{vAt}, v{vT}, vcc")
    A(f"v_mov_b32 v{vM}, 0xff61b1e6\nv_mov_b32 v{vLs}, 0")
    for e in range(24): A(f"v_mov_b32 v{vAcc+e}, 0")
    A(f"s_mov_b32 s{sM8}, 0xff00ff00\ns_mov_b32 s{sM8+1}, 0xff00ff00\ns_mov_b32 s{sScale}, {hex(SCALE)}\ns_mov_b32 s{sLog}, {hex(LOG2E)}")
    A(f"s_mul_i32 s{sT}, s{sH}, {HEADB}")
    A(f"s_lshl_b32 s{sNext}, s{sS}, 2\ns_add_u32 s{sNext}, s{sNext}, s{sW}\ns_sub_u32 s{sNext}, s{sNext}, 4\ns_mul_i32 s{sNext}, s{sNext}, {Ts*TILE}\ns_add_u32 s{sNext}, s{sNext}, s{sT}")
    A(f"s_add_u32 s{sDyn}, s{sT}, {32*Ts*TILE}")
    A(f"s_lshl_b32 s{sTick}, s{sH}, 8\ns_add_u32 s{sTick}, s{sTick}, {WS_TICK}")
    A("s_waitcnt lgkmcnt(0)")
    if instr: A(f"s_mov_b32 s{TS0}, s70")
    nl = L("nolead")
    SDB2 = 56
    A(f"s_cmp_lg_u32 s2, 0\ns_cbranch_scc1 {nl}\ns_cmp_lg_u32 s{sW}, 4\ns_cbranch_scc1 {nl}")
    srd(SDB2, DBG, 256)
    A(f"s_or_b32 s{sT}, s70, 1\nv_mov_b32 v{vT}, s{sT}")
    A(f"buffer_store_dword v{vT}, v{vAt}, s[{SDB2}:{SDB2+3}], 0 offen sc1")
    A.label(nl)
    A("s_barrier")
    srd(SK_, KP, KVB); srd(SV_, VP, KVB); srd(SWS2, WS, WS_N)
    ts(1)

    def loads(slot, which, so):
        sr = SK_ if which == "K" else SV_
        r0 = vRing + 24 * slot + (0 if which == "K" else 12)
        for j in range(3):
            A(f"buffer_load_dwordx4 v[{r0+4*j}:{r0+4*j+3}], v{vOff}, s[{sr}:{sr+3}], {so} offen offset:{128*j} {nt}")

    def atomic(d):
        A(f"v_mov_b32 v{vTick+d}, 1")
        A(f"buffer_atomic_add v{vTick+d}, v{vAt}, s[{SWS2}:{SWS2+3}], s{sAo} offen sc0")

    def scores(slot):
        k0 = vRing + 24 * slot
        A(f"v_mov_b32 v{vA}, 0\nv_mov_b32 v{vB2}, 0")
        for n in range(12):
            A(f"v_dot2c_f32_bf16 v{vA if n % 2 == 0 else vB2}, v{k0+n}, v{vQ+n}")
        A(f"v_add_f32 v{vA}, v{vA}, v{vB2}")
        for m in ("quad_perm:[1,0,3,2]", "quad_perm:[2,3,0,1]", "row_half_mirror"):
            A(f"v_add_f32_dpp v{vA}, v{vA}, v{vA} {m} row_mask:0xf bank_mask:0xf")
        A(f"v_cvt_pk_bf16_f32 v{vA}, 0, v{vA}\nv_mul_f32 v{vA}, s{sScale}, v{vA}\nv_cvt_pk_bf16_f32 v{vA}, 0, v{vA}")

    def softmax():
        sk = L("nores")
        A(f"v_cmp_gt_f32 vcc, v{vA}, v{vM}\ns_cbranch_vccz {sk}")
        A(f"v_max_f32 v{vB2}, v{vM}, v{vA}\nv_sub_f32 v{vP}, v{vM}, v{vB2}\nv_mul_f32 v{vP}, s{sLog}, v{vP}\nv_exp_f32 v{vP}, v{vP}\nv_mov_b32 v{vM}, v{vB2}")
        A(f"v_mul_f32 v{vLs}, v{vLs}, v{vP}")
        for e in range(24): A(f"v_mul_f32 v{vAcc+e}, v{vAcc+e}, v{vP}")
        A.label(sk)
        A(f"v_sub_f32 v{vP}, v{vA}, v{vM}\nv_mul_f32 v{vP}, s{sLog}, v{vP}\nv_exp_f32 v{vP}, v{vP}")
        A(f"v_add_f32 v{vLs}, v{vLs}, v{vP}\nv_cvt_pk_bf16_f32 v{vPl}, v{vP}, 0\nv_cvt_pk_bf16_f32 v{vPh}, 0, v{vP}")

    def pv(slot):
        v0_ = vRing + 24 * slot + 12
        for n in range(12):
            A(f"v_dot2c_f32_bf16 v{vAcc+2*n}, v{v0_+n}, v{vPl}")
            A(f"v_dot2c_f32_bf16 v{vAcc+2*n+1}, v{v0_+n}, v{vPh}")

    for k in range(R):
        if k == pre0:
            lp, dn = L("pollgo"), L("pollgo_done")
            A(f"v_mov_b32 v{vT}, {L_CNT}\ns_mov_b32 s{sSpin}, {spin * 4}")
            A.label(lp)
            A(f"ds_read_b32 v{vA}, v{vT} offset:{gooff}\ns_waitcnt lgkmcnt(0)\nv_readfirstlane_b32 s{sT}, v{vA}")
            A(f"s_cmp_ge_u32 s{sT}, {gocnt}\ns_cbranch_scc1 {dn}")
            spin_tail(sSpin, lp, dn)
            A.label(dn)
            ts(7)
        p = P0 if (P0 is not None and k < n0) else P
        if k >= p: A(f"s_waitcnt vmcnt({(p-1)*6})")
        loads(k, "K", f"s{sNext}"); loads(k, "V", f"s{sNext}")
        A(f"s_add_u32 s{sNext}, s{sNext}, {TILE}")
    ts(2)
    sDryS = 60
    if dryS:
        A(f"s_mov_b32 s{sDryS}, 1\ns_branch L_done")
        A.label("L_dryret")
        A(f"s_mov_b32 s{sDryS}, 0")
    lp, dn = L("pollq"), L("pollq_done")
    A(f"v_mov_b32 v{vT}, {L_CNT}\ns_mov_b32 s{sSpin}, {spin * 4}")
    A.label(lp)
    A(f"ds_read_b32 v{vA}, v{vT} offset:4\ns_waitcnt lgkmcnt(0)\nv_readfirstlane_b32 s{sT}, v{vA}")
    A(f"s_cmp_ge_u32 s{sT}, {0 if noq else 3}\ns_cbranch_scc1 {dn}")
    spin_tail(sSpin, lp, dn)
    A.label(dn)
    A(f"v_and_b32 v{vA}, 7, v0\nv_lshlrev_b32 v{vA}, 4, v{vA}")
    for j in range(3): A(f"ds_read_b128 v[{vQ+4*j}:{vQ+4*j+3}], v{vA} offset:{L_QL + 128*j}")
    A("s_waitcnt lgkmcnt(0)")
    ts(3)
    A(f"s_mov_b32 s{sAo}, {OOBV}")
    for k in range(R):
        newer = (R - 1 - k) * 6 + min(k, D) * 7
        A(f"s_waitcnt vmcnt({newer + 3})")
        if fine and k < 6: ts(8 + k)
        scores(k)
        if k < D:
            A(f"s_mov_b32 s{sOff+k}, s{sNext}\ns_add_u32 s{sNext}, s{sNext}, {TILE}")
            atomic(k)
            loads(k, "K", f"s{sOff+k}")
        softmax()
        A(f"s_waitcnt vmcnt({newer + (4 if k < D else 0)})")
        pv(k)
        if k < D: loads(k, "V", f"s{sOff+k}")
    A(f"s_mov_b32 s{sN}, {R}")
    ts(4)
    A.label("L_loop")
    if instr and not fine:
        for k, mult in enumerate((2, 4, 8, 16, 24, 30)):
            sk = L("nots")
            A(f"s_cmp_lg_u32 s{sN}, {R + D * mult}\ns_cbranch_scc1 {sk}")
            ts(8 + k)
            A.label(sk)
    for d in range(D):
        A(f"s_cmp_eq_u32 s{sOff+d}, {OOBS}\ns_cbranch_scc1 L_done")
        A(f"s_waitcnt vmcnt({(D-1)*7 + 3})")
        scores(d)
        A(f"v_readfirstlane_b32 s{sT}, v{vTick+d}")
        A(f"s_mul_i32 s{sT2}, s{sT}, {TILE}\ns_add_u32 s{sT2}, s{sT2}, s{sDyn}")
        A(f"s_cmp_ge_u32 s{sT}, {NDYN}\ns_cselect_b32 s{sT2}, {OOBS}, s{sT2}")
        A(f"s_cmp_lt_u32 s{sN}, {Ts - D}\ns_cselect_b32 s{sOff+d}, s{sNext}, s{sT2}")
        A(f"s_add_u32 s{sNext}, s{sNext}, {TILE}")
        A(f"s_cmp_ge_u32 s{sN}, {Ts - 2*D}\ns_cselect_b32 s{sAo}, s{sTick}, {OOBV}")
        atomic(d)
        loads(d, "K", f"s{sOff+d}")
        softmax()
        A(f"s_waitcnt vmcnt({(D-1)*7 + 4})")
        pv(d)
        loads(d, "V", f"s{sOff+d}")
        A(f"s_add_u32 s{sN}, s{sN}, 1")
    A(f"s_cmp_lt_u32 s{sN}, {NT + 64}\ns_cbranch_scc1 L_loop")
    A.label("L_done")
    ts(5)
    if instr: A(f"s_mov_b32 s{TS0+15}, s{sN}")
    A(f"v_mov_b32 v{vA}, v{vM}")
    A(f"v_max_f32_dpp v{vA}, v{vA}, v{vA} row_ror:8 row_mask:0xf bank_mask:0xf")
    reduce_rows(vA, vB2, "v_max_f32")
    A(f"v_sub_f32 v{vP}, v{vM}, v{vA}\nv_mul_f32 v{vP}, s{sLog}, v{vP}\nv_exp_f32 v{vP}, v{vP}")
    A(f"v_lshrrev_b32 v{vB2}, 3, v0\nv_and_b32 v{vT}, 7, v0\nv_lshlrev_b32 v{vT}, 5, v{vT}\nv_lshl_add_u32 v{vT}, v{vB2}, 2, v{vT}")
    A(f"s_sub_u32 s{sT}, s{sW}, 4\ns_mul_i32 s{sT}, s{sT}, 800\nv_add_u32 v{vT}, s{sT}, v{vT}")
    A(f"v_mul_f32 v{vLs}, v{vLs}, v{vP}")
    for e in range(24): A(f"v_mul_f32 v{vAcc+e}, v{vAcc+e}, v{vP}")
    A(f"v_add_f32_dpp v{vLs}, v{vLs}, v{vLs} row_ror:8 row_mask:0xf bank_mask:0xf")
    rs8([vAcc, vAcc + 8, vAcc + 16], sM8)
    for j in range(3): A(f"ds_write_b32 v{vT}, v{vAcc+8*j} offset:{L_SO + 256*j}")
    reduce_rows(vLs, vB2, "v_add_f32")
    A(f"v_mov_b32 v{vB2}, s{sT}")
    A("s_mov_b64 exec, 1")
    A(f"ds_write_b32 v{vB2}, v{vA} offset:{L_SO + 768}\nds_write_b32 v{vB2}, v{vLs} offset:{L_SO + 772}")
    A("s_mov_b64 exec, -1")
    A("s_waitcnt lgkmcnt(0)")
    if dryS: A(f"s_cmp_eq_u32 s{sDryS}, 1\ns_cbranch_scc1 L_dryret")
    ts(6)
    A("s_barrier")
    if instr:
        A("s_waitcnt vmcnt(0)")
        ts_store(vA, vB2, SWS2)
    A.label("L_end")
    A("s_endpgm")

    body = a.finalize()
    nvg = 256
    head = []
    if listform:
        head.append(f"; @launch kernel={kname} grid=(256,1,1) block=(512,1,1) lds={L_END}")
    else:
        head.append(f"; @launch grid=(256,1,1) block=(512,1,1) lds={L_END}")
    head += ['.amdgcn_target "amdgcn-amd-amdhsa--gfx950"', ".text", f".globl {kname}", ".p2align 8", f".type {kname},@function", f"{kname}:"]
    tail = ['.section .rodata,"a"', ".p2align 6", f".amdhsa_kernel {kname}",
            f"  .amdhsa_next_free_vgpr {nvg}", "  .amdhsa_next_free_sgpr 102", f"  .amdhsa_accum_offset {nvg}",
            "  .amdhsa_group_segment_fixed_size 0", "  .amdhsa_kernarg_size 96", "  .amdhsa_user_sgpr_count 2",
            "  .amdhsa_user_sgpr_kernarg_segment_ptr 1", "  .amdhsa_system_sgpr_workgroup_id_x 1", ".end_amdhsa_kernel"]
    return "\n".join(head) + "\n" + body + "\n".join(tail) + "\n"


if __name__ == "__main__":
    cfg = json.loads(sys.argv[1]) if len(sys.argv) > 1 else {}
    sys.stdout.write(gen(**cfg))
```
